```python
import torch

def _softmax(x, axis=-1):
    return torch.softmax(x, dim=axis)
def _gelu(x):
    return torch.nn.functional.gelu(x, approximate="tanh")
def _silu(x):
    return torch.nn.functional.silu(x)
def _sigmoid(x):
    return torch.sigmoid(x)
def _layernorm(x, axis=-1, eps=1e-5):
    m = x.mean(dim=axis, keepdim=True)
    v = x.var(dim=axis, keepdim=True, unbiased=False)
    return (x - m) / torch.sqrt(v + eps)
def _scatter_add(tgt, idx, src, axis=0):
    return tgt.clone().index_add_(axis, idx, src)
def _segment_sum(src, seg, n):
    out = torch.zeros((n,) + src.shape[1:], dtype=src.dtype)
    return out.index_add_(0, seg, src)
def _pad(x, pw):
    flat = tuple(v for pair in reversed(pw) for v in pair)
    return torch.nn.functional.pad(x, flat)

kernel_name = 'parallel_sum__gqa_block_cached__swiglu_ffn__decode'

def setup_inputs():

    _w = (lambda a: (lambda t: t.to(torch.bfloat16) if t.is_floating_point() else t)(torch.as_tensor(a)))
    def _A_setup():
        B, Sq, D = 1, 1, 448
        Hq, Hkv, Sk, Dh = 16, 8, 32768, 256
        assert Hq % Hkv == 0, (Hq, Hkv)
        return {
            "x": _w((lambda *s: torch.randn(*s, dtype=torch.bfloat16) * 0.05)(B, Sq, D)),
            "k_cache": _w((lambda *s: torch.randn(*s, dtype=torch.bfloat16) * 3.2)(B, Hkv, Sk, Dh)),
            "v_cache": _w((lambda *s: torch.randn(*s, dtype=torch.bfloat16) * 1.6)(B, Hkv, Sk, Dh)),
            "wq": _w((lambda *s: torch.randn(*s, dtype=torch.bfloat16) * 3.2)(D, Hq * Dh) * (D ** -0.5)),
            "wo": _w((lambda *s: torch.randn(*s, dtype=torch.bfloat16) * 1.6)(Hq * Dh, D) * ((Hq * Dh) ** -0.5)),
        }
    _A_in = _A_setup()

    def _B_setup():
        B, S, D, F = 1, 1, 448, 1792
        return {
            "x": _w((lambda *s: torch.randn(*s, dtype=torch.bfloat16) * 0.05)(B, S, D)),
            "w_gate": _w((lambda *s: torch.randn(*s, dtype=torch.bfloat16) * 0.05)(D, F)),
            "w_up": _w((lambda *s: torch.randn(*s, dtype=torch.bfloat16) * 0.05)(D, F)),
            "w_down": _w((lambda *s: torch.randn(*s, dtype=torch.bfloat16) * 0.05)(F, D)),
        }
    _B_in = _B_setup()

    return {
        "A_x": _A_in["x"],
        "A_k_cache": _A_in["k_cache"],
        "A_v_cache": _A_in["v_cache"],
        "A_wq": _A_in["wq"],
        "A_wo": _A_in["wo"],
        "B_x": _B_in["x"],
        "B_w_gate": _B_in["w_gate"],
        "B_w_up": _B_in["w_up"],
        "B_w_down": _B_in["w_down"],
    }

def reference(A_x, A_k_cache, A_v_cache, A_wq, A_wo, B_x, B_w_gate, B_w_up, B_w_down):
    def _A_ref(x, k_cache, v_cache, wq, wo):
        B, Sq, D = x.shape
        Hq, Dh = 16, 256
        Hkv = k_cache.shape[1]
        rep = Hq // Hkv
        q = (lambda x, *d: x.permute(*d))((x @ wq).reshape(B, Sq, Hq, Dh), 0, 2, 1, 3)
        k = (lambda x, n, axis: torch.repeat_interleave(x, n, dim=axis))(k_cache, rep, axis=1)
        v = (lambda x, n, axis: torch.repeat_interleave(x, n, dim=axis))(v_cache, rep, axis=1)
        scores = torch.einsum("bhqd,bhkd->bhqk", q, k) * (Dh ** -0.5)
        p = _softmax(scores, axis=-1)
        o = torch.einsum("bhqk,bhkd->bhqd", p, v)
        return (lambda x, *d: x.permute(*d))(o, 0, 2, 1, 3).reshape(B, Sq, Hq * Dh) @ wo

    def _B_ref(x, w_gate, w_up, w_down):
        g = _silu(x @ w_gate)
        u = x @ w_up
        return (g * u) @ w_down

    x = A_x
    xn = _layernorm(x, axis=-1)
    return x + _A_ref(xn, A_k_cache, A_v_cache, A_wq, A_wo) + _B_ref(xn, B_w_gate, B_w_up, B_w_down)
```

```python
import sys, math
from asmutil import build

KN = "parallel_sum__gqa_block_cached__swiglu_ffn__decode_kernel"

QP = 0x000000
GP = 0x010000
UP = 0x020000
ST = 0x030000
OP = 0x040000
YA = 0x100000
YF = 0x180000
WS_BYTES = 0x200000
TS = 0x1000000
L_Q = 0
L_PART = 1024
L_STAT = L_PART + 4*2048
L_FIN = L_STAT + 64
LDS_BYTES = L_FIN + 256
SPIN_LIMIT = 400000
CEXP = 0.0625 * math.log2(math.e)
import struct
def f2u(f): return struct.unpack("<I", struct.pack("<f", f))[0]

class G:
    def __init__(self): self.L = []; self.lab = 0
    def __call__(self, s): self.L.append(s)
    def label(self, base="L"):
        self.lab += 1; return f".{base}{self.lab}"
    def text(self): return "\n".join(self.L) + "\n"

def srd(A, d, base, nbytes):
    A(f"s_mov_b32 s{d}, s{base}")
    A(f"s_mov_b32 s{d+1}, s{base+1}")
    A(f"s_mov_b32 s{d+2}, {hex(nbytes)}")
    A(f"s_mov_b32 s{d+3}, 0x20000")

def dpp(A, op, dst, a, b, ctrl, bank="0xf"):
    A(f"{op}_dpp v{dst}, v{a}, v{b} {ctrl} row_mask:0xf bank_mask:{bank}")

def row_allreduce(A, op, regs):
    for ctrl in ["quad_perm:[1,0,3,2]", "quad_perm:[2,3,0,1]", "row_half_mirror", "row_mirror"]:
        if len(regs) < 3: A(f"s_nop {2-len(regs)+0}" if len(regs) < 2 else "s_nop 0")
        for r in regs: dpp(A, op, r, r, r, ctrl)

def cross_allreduce(A, op, regs, tmps):
    for sw in ["v_permlane16_swap_b32", "v_permlane32_swap_b32"]:
        for r, t in zip(regs, tmps): A(f"v_mov_b32 v{t}, v{r}")
        A("s_nop 1")
        for r, t in zip(regs, tmps): A(f"{sw} v{r}, v{t}")
        A("s_nop 1")
        for r, t in zip(regs, tmps): A(f"{op} v{r}, v{r}, v{t}")

def gen(diag=False):
    A = G()
    A("; @launch grid=(256,1,1) block=(512,1,1) lds=%d" % LDS_BYTES)
    A('.amdgcn_target "amdgcn-amd-amdhsa--gfx950"')
    A(".text")
    A(f".globl {KN}\n.p2align 8\n.type {KN},@function\n{KN}:")
    A("s_cmp_ge_u32 s2, 256")
    A("s_cbranch_scc1 .Ldone")
    if diag: A("s_memrealtime s[90:91]")
    A("s_load_dwordx16 s[16:31], s[0:1], 0")
    A("s_load_dwordx8 s[32:39], s[0:1], 64")
    A("v_lshrrev_b32 v1, 6, v0")
    A("v_and_b32 v0, 63, v0")
    A("v_readfirstlane_b32 s3, v1")
    A("s_lshr_b32 s4, s2, 5")
    A("s_and_b32 s5, s2, 31")
    A("s_mov_b32 s8, 0x05040100")
    A("s_mov_b32 s9, 0x07060302")
    A(f"s_mov_b32 s10, {hex(f2u(CEXP))}")
    A("s_cmp_lt_u32 s3, 4")
    A("s_cbranch_scc1 .Lhelper")
    RING = 64
    Q = 16
    ACC = 32
    S = 4
    M = 8
    Lr = 10
    NMC = 12
    P = 14
    T = 192
    A("s_sub_u32 s6, s3, 4")
    A("v_lshrrev_b32 v2, 4, v0")
    A("v_and_b32 v3, 15, v0")
    A("v_lshlrev_b32 v3, 4, v3")
    A("v_lshl_add_u32 v1, v2, 9, v3")
    A("s_lshl_b32 s11, s2, 19")
    A("s_lshl_b32 s12, s6, 17")
    A("s_add_u32 s11, s11, s12")
    A("s_lshl_b32 s12, s2, 2")
    A("s_add_u32 s12, s12, s6")
    A("s_mul_i32 s12, s12, 3")
    A("s_waitcnt lgkmcnt(0)")
    srd(A, 40, 18, 0x8000000)
    srd(A, 44, 20, 0x8000000)
    def unit_off():
        A("s_add_u32 s13, s14, s12")
        A("s_and_b32 s13, s13, 31")
        A("s_lshl_b32 s13, s13, 12")
        A("s_add_u32 s13, s13, s11")
        A("s_cmp_lt_u32 s14, 32")
        A("s_cselect_b32 s13, s13, 0x10000000")
        A("s_add_u32 s14, s14, 1")
    def kreg(slot, t, hf): return RING + slot*32 + (t*2+hf)*4
    def vreg(slot, t, hf): return RING + slot*32 + 16 + (hf*2+t)*4
    def issue_k(slot):
        for t in range(2):
            for hf in range(2):
                r = kreg(slot, t, hf)
                A(f"buffer_load_dwordx4 v[{r}:{r+3}], v1, s[40:43], s13 offen offset:{t*2048+hf*256} nt")
    def issue_v(slot):
        for hf in range(2):
            for t in range(2):
                r = vreg(slot, t, hf)
                A(f"buffer_load_dwordx4 v[{r}:{r+3}], v1, s[44:47], s13 offen offset:{t*2048+hf*256} nt")
    A("s_mov_b32 s14, 0")
    for slot in range(4):
        unit_off(); issue_k(slot); issue_v(slot)
    for r in range(32): A(f"v_mov_b32 v{ACC+r}, 0")
    for h in range(2):
        A(f"v_mov_b32 v{M+h}, {hex(f2u(-1e30))}")
        A(f"v_mov_b32 v{Lr+h}, 0")
        A(f"v_mov_b32 v{NMC+h}, 0")
    A("s_barrier")
    for h in range(2):
        for hf in range(2):
            r = Q + (h*2+hf)*4
            A(f"ds_read_b128 v[{r}:{r+3}], v3 offset:{L_Q + h*512 + hf*256}")
    A("s_waitcnt lgkmcnt(0)")
    if diag: A("s_memrealtime s[92:93]")
    A("s_mov_b32 s15, 0")
    A(".Lsloop:")
    for slot in range(4):
        unit_off()
        for x in range(4): A(f"v_mov_b32 v{S+x}, 0")
        A("s_waitcnt vmcnt(28)")
        for j in range(4):
            for hf in range(2):
                for t in range(2):
                    for h in range(2):
                        A(f"v_dot2c_f32_bf16 v{S+t*2+h}, v{kreg(slot,t,hf)+j}, v{Q+(h*2+hf)*4+j}")
        issue_k(slot)
        row_allreduce(A, "v_add_f32", [S, S+1, S+2, S+3])
        for h in range(2):
            A(f"v_cvt_pk_bf16_f32 v{T+h}, v{S+h}, v{S+2+h}")
        for h in range(2):
            A(f"v_lshlrev_b32 v{S+h}, 16, v{T+h}")
            A(f"v_and_b32 v{S+2+h}, 0xffff0000, v{T+h}")
        for h in range(2):
            A(f"v_max_f32 v{T+2+h}, v{S+h}, v{S+2+h}")
        A(f"v_cmp_gt_f32 vcc, v{T+2}, v{M}")
        A(f"v_cmp_gt_f32 s[48:49], v{T+3}, v{M+1}")
        A("s_or_b64 s[48:49], vcc, s[48:49]")
        skip = A.label("Lskip")
        A(f"s_cbranch_scc0 {skip}")
        for h in range(2):
            A(f"v_max_f32 v{T+2+h}, v{T+2+h}, v{M+h}")
        for h in range(2):
            A(f"v_sub_f32 v{T+4+2*h}, v{M+h}, v{T+2+h}")
        for h in range(2):
            A(f"v_mul_f32 v{T+4+2*h}, s10, v{T+4+2*h}")
        for h in range(2):
            A(f"v_exp_f32 v{T+4+2*h}, v{T+4+2*h}")
        for h in range(2):
            A(f"v_mov_b32 v{M+h}, v{T+2+h}")
            A(f"v_mul_f32 v{NMC+h}, s10, v{T+2+h}")
        for h in range(2):
            A(f"v_mul_f32 v{Lr+h}, v{Lr+h}, v{T+4+2*h}")
            for r in range(0, 16, 2):
                a = ACC + h*16 + r
                A(f"v_pk_mul_f32 v[{a}:{a+1}], v[{a}:{a+1}], v[{T+4+2*h}:{T+5+2*h}] op_sel_hi:[1,0]")
        A(f"{skip}:")
        for x in range(4):
            A(f"v_fma_f32 v{S+x}, v{S+x}, s10, -v{NMC+(x&1)}")
        for x in range(4):
            A(f"v_exp_f32 v{S+x}, v{S+x}")
        A("s_nop 0")
        for h in range(2):
            A(f"v_cvt_pk_bf16_f32 v{P+h}, v{S+h}, v{S+2+h}")
            A(f"v_add_f32 v{Lr+h}, v{Lr+h}, v{S+h}")
        for h in range(2):
            A(f"v_add_f32 v{Lr+h}, v{Lr+h}, v{S+2+h}")
        A("s_waitcnt vmcnt(28)")
        for hf in range(2):
            for j in range(4):
                x = vreg(slot, 0, hf) + j; y = vreg(slot, 1, hf) + j
                tl = T + 8 + (j&1)*2
                A(f"v_perm_b32 v{tl}, v{y}, v{x}, s8")
                A(f"v_perm_b32 v{tl+1}, v{y}, v{x}, s9")
                for h in range(2):
                    A(f"v_dot2c_f32_bf16 v{ACC+h*16+hf*8+2*j}, v{tl}, v{P+h}")
                    A(f"v_dot2c_f32_bf16 v{ACC+h*16+hf*8+2*j+1}, v{tl+1}, v{P+h}")
        issue_v(slot)
    A("s_add_u32 s15, s15, 1")
    A("s_cmp_lt_u32 s15, 8")
    A("s_cbranch_scc1 .Lsloop")
    if diag: A("s_memrealtime s[94:95]")
    for h in range(2): A(f"v_mov_b32 v{T+2+h}, v{M+h}")
    cross_allreduce(A, "v_max_f32", [T+2, T+3], [T+10, T+11])
    for h in range(2): A(f"v_sub_f32 v{T+4+2*h}, v{M+h}, v{T+2+h}")
    for h in range(2): A(f"v_mul_f32 v{T+4+2*h}, s10, v{T+4+2*h}")
    for h in range(2): A(f"v_exp_f32 v{T+4+2*h}, v{T+4+2*h}")
    A("s_nop 0")
    for h in range(2):
        A(f"v_mul_f32 v{Lr+h}, v{Lr+h}, v{T+4+2*h}")
        for r in range(0, 16, 2):
            a = ACC + h*16 + r
            A(f"v_pk_mul_f32 v[{a}:{a+1}], v[{a}:{a+1}], v[{T+4+2*h}:{T+5+2*h}] op_sel_hi:[1,0]")
    cross_allreduce(A, "v_add_f32", [Lr, Lr+1], [T+10, T+11])
    for r in range(16): A(f"v_permlane32_swap_b32 v{ACC+r}, v{ACC+16+r}")
    A("s_nop 1")
    for r in range(16): A(f"v_add_f32 v{ACC+r}, v{ACC+r}, v{ACC+16+r}")
    A("s_nop 1")
    for r in range(8): A(f"v_permlane16_swap_b32 v{ACC+r}, v{ACC+8+r}")
    A("s_nop 1")
    for r in range(8): A(f"v_add_f32 v{ACC+r}, v{ACC+r}, v{ACC+8+r}")
    A("s_lshl_b32 s13, s6, 11")
    A("v_lshl_add_u32 v2, v0, 5, s13")
    A(f"ds_write_b128 v2, v[{ACC}:{ACC+3}] offset:{L_PART}")
    A(f"ds_write_b128 v2, v[{ACC+4}:{ACC+7}] offset:{L_PART+16}")
    A(f"v_mov_b32 v{T+12}, v{T+2}")
    A(f"v_mov_b32 v{T+13}, v{Lr}")
    A(f"v_mov_b32 v{T+14}, v{T+3}")
    A(f"v_mov_b32 v{T+15}, v{Lr+1}")
    A("s_lshl_b32 s13, s6, 4")
    A("v_mov_b32 v2, s13")
    A("s_mov_b64 exec, 1")
    A(f"ds_write_b128 v2, v[{T+12}:{T+15}] offset:{L_STAT}")
    A("s_mov_b64 exec, -1")
    A("s_waitcnt lgkmcnt(0)")
    A("s_barrier")
    if diag:
        srd(A, 48, 38, 0x2000000)
        A("s_waitcnt lgkmcnt(0)")
        A("v_mov_b32 v4, s90\nv_mov_b32 v5, s92\nv_mov_b32 v6, s94\nv_mov_b32 v7, 0")
        A(f"s_lshl_b32 s13, s2, 3\ns_add_u32 s13, s13, s3\ns_lshl_b32 s13, s13, 5\ns_add_u32 s13, s13, {TS}")
        A("v_mov_b32 v2, s13")
        A("buffer_store_dwordx4 v[4:7], v2, s[48:51], 0 offen")
    A("s_endpgm")

    A(".Lhelper:")
    A("s_setprio 2")
    X4 = 4
    XR = 40
    W = 64
    WO = 128
    WOP = 144
    WD = 160
    WDP = 192
    AC = 24
    XP = 32
    A("v_lshrrev_b32 v2, 3, v0")
    A("v_and_b32 v3, 7, v0")
    A("v_lshlrev_b32 v8, 4, v0")
    A("v_mov_b32 v9, 0")
    A("s_waitcnt lgkmcnt(0)")
    srd(A, 40, 16, 896)
    srd(A, 48, 38, WS_BYTES)
    srd(A, 52, 36, 256)
    srd(A, 56, 24, 4096*448*2)
    A("s_mul_i32 s60, s2, 14336")
    A("s_mul_i32 s61, s3, 224")
    A("s_add_u32 s60, s60, s61")
    A("v_lshlrev_b32 v10, 2, v0")
    def wo_loads():
        for d in range(16):
            off = d*896
            hi, lo = off & ~4095, off & 4095
            if hi:
                A(f"s_add_u32 s61, s60, {hi}")
                A(f"buffer_load_dword v{WO+d}, v10, s[56:59], s61 offen offset:{lo} nt")
            else:
                A(f"buffer_load_dword v{WO+d}, v10, s[56:59], s60 offen offset:{lo} nt")
    A("s_cmp_eq_u32 s3, 3")
    A("s_cbranch_scc1 .Lh3")
    A("buffer_load_dwordx4 v[4:7], v8, s[40:43], 0 offen")
    A("s_cmp_eq_u32 s3, 0")
    A("s_cbranch_scc0 .Lffn1")
    def gemv_task(nk, rowstride, tag):
        A(f"s_mov_b32 s64, {rowstride}")
        A("v_mul_lo_u32 v11, v2, s64")
        A("v_lshl_add_u32 v11, v3, 4, v11")
        A("v_lshlrev_b32 v12, 1, v2")
        A("s_lshl_b32 s65, s62, 1")
        for k in range(nk):
            A(f"buffer_load_ushort v{XR+k}, v12, s[40:43], s65 offen offset:{k*16}")
        for k in range(nk):
            A(f"buffer_load_dwordx4 v[{W+4*k}:{W+4*k+3}], v11, s[44:47], s63 offen nt")
            A(f"s_add_u32 s63, s63, {8*rowstride}")
        wo_loads()
        extra = 16
        if tag == "g":
            pass
        A(f"s_waitcnt vmcnt({2*nk+extra})")
        for j in range(4):
            A(f"v_lshlrev_b32 v{16+2*j}, 16, v{X4+j}")
            A(f"v_and_b32 v{17+2*j}, 0xffff0000, v{X4+j}")
        A("v_add_f32 v13, v16, v17")
        for j in range(2, 8): A(f"v_add_f32 v13, v13, v{16+j}")
        row_allreduce(A, "v_add_f32", [13])
        cross_allreduce(A, "v_add_f32", [13], [14])
        A(f"v_mul_f32 v13, {hex(f2u(1.0/448))}, v13")
        for j in range(8): A(f"v_sub_f32 v{16+j}, v{16+j}, v13")
        A("v_mul_f32 v14, v16, v16")
        for j in range(1, 8): A(f"v_fmac_f32 v14, v{16+j}, v{16+j}")
        A("v_cmp_gt_u32 vcc, 56, v0")
        A("s_nop 1")
        A("v_cndmask_b32 v14, 0, v14, vcc")
        row_allreduce(A, "v_add_f32", [14])
        cross_allreduce(A, "v_add_f32", [14], [15])
        A(f"v_mul_f32 v14, {hex(f2u(1.0/448))}, v14")
        A("v_cvt_pk_bf16_f32 v15, v13, v14")
        A("v_lshlrev_b32 v13, 16, v15")
        A("v_and_b32 v14, 0xffff0000, v15")
        A(f"v_add_f32 v14, {hex(f2u(1e-5))}, v14")
        A("v_cvt_pk_bf16_f32 v14, v14, v14")
        A("v_lshlrev_b32 v14, 16, v14")
        A("v_sqrt_f32 v14, v14")
        A("s_nop 0")
        A("v_cvt_pk_bf16_f32 v14, v14, v14")
        A("v_lshlrev_b32 v14, 16, v14")
        A("v_rcp_f32 v14, v14")
        A(f"s_waitcnt vmcnt({nk+extra})")
        npair = (nk+1)//2
        for p in range(npair):
            k0, k1 = 2*p, 2*p+1
            A(f"v_lshlrev_b32 v16, 16, v{XR+k0}")
            A("v_sub_f32 v16, v16, v13")
            if k1 < nk:
                A(f"v_lshlrev_b32 v17, 16, v{XR+k1}")
                A("v_sub_f32 v17, v17, v13")
            else:
                A("v_mov_b32 v17, 0")
            A("v_cvt_pk_bf16_f32 v18, v16, v17")
            A("v_lshlrev_b32 v16, 16, v18")
            A("v_and_b32 v17, 0xffff0000, v18")
            A("v_mul_f32 v16, v16, v14")
            A("v_mul_f32 v17, v17, v14")
            A(f"v_cvt_pk_bf16_f32 v{XP+p}, v16, v17")
        for j in range(8): A(f"v_mov_b32 v{AC+j}, 0")
        for p in range(npair):
            k0 = 2*p; k1 = min(2*p+1, nk-1)
            A(f"s_waitcnt vmcnt({nk-1-k1+extra})")
            for dd in range(4):
                tl = 16 + (dd&1)*2
                A(f"v_perm_b32 v{tl}, v{W+4*k1+dd}, v{W+4*k0+dd}, s8")
                A(f"v_perm_b32 v{tl+1}, v{W+4*k1+dd}, v{W+4*k0+dd}, s9")
                A(f"v_dot2c_f32_bf16 v{AC+2*dd}, v{tl}, v{XP+p}")
                A(f"v_dot2c_f32_bf16 v{AC+2*dd+1}, v{tl+1}, v{XP+p}")
        A("v_lshrrev_b32 v16, 5, v0")
        A("v_bfe_u32 v17, v0, 4, 1")
        A("v_bfe_u32 v18, v0, 3, 1")
        A("v_lshlrev_b32 v11, 3, v3")
        A("v_lshl_add_u32 v11, v16, 2, v11")
        A("v_lshl_add_u32 v11, v17, 1, v11")
        A("v_add_u32 v11, v11, v18")
        A("v_lshlrev_b32 v11, 2, v11")
        for j in range(4): A(f"v_permlane32_swap_b32 v{AC+j}, v{AC+4+j}")
        A("s_nop 1")
        for j in range(4): A(f"v_add_f32 v{AC+j}, v{AC+j}, v{AC+4+j}")
        A("s_nop 1")
        for j in range(2): A(f"v_permlane16_swap_b32 v{AC+j}, v{AC+2+j}")
        A("s_nop 1")
        for j in range(2): A(f"v_add_f32 v{AC+j}, v{AC+j}, v{AC+2+j}")
        A("s_nop 1")
        dpp(A, "v_add_f32", AC+2, AC, AC, "row_ror:8", "0x3")
        dpp(A, "v_add_f32", AC+2, AC+1, AC+1, "row_ror:8", "0xc")
    def atomic_inc(soff):
        A("v_mov_b32 v16, 1")
        A("s_mov_b64 exec, 1")
        A(f"buffer_atomic_add v16, v9, s[52:55], {soff} offen sc1")
        A("s_mov_b64 exec, -1")
    srd(A, 44, 22, 448*4096*2)
    A("s_lshr_b32 s66, s5, 3")
    A("s_and_b32 s67, s5, 7")
    A("s_mul_i32 s62, s66, 112")
    A("s_lshl_b32 s63, s62, 13")
    A("s_lshl_b32 s68, s4, 9")
    A("s_lshl_b32 s69, s67, 6")
    A("s_add_u32 s68, s68, s69")
    A("s_lshl_b32 s69, s68, 1")
    A("s_add_u32 s63, s63, s69")
    gemv_task(14, 8192, "q")
    A("s_lshl_b32 s69, s66, 14")
    A("s_lshl_b32 s68, s68, 2")
    A("s_add_u32 s69, s69, s68")
    A(f"buffer_store_dword v{AC+2}, v11, s[48:51], s69 offen offset:{QP} sc1")
    A("s_waitcnt vmcnt(0)")
    A("s_lshl_b32 s70, s4, 2")
    atomic_inc("s70")
    A("s_mov_b32 s71, 0")
    A(".Lpollq:")
    A("buffer_load_dword v16, v9, s[52:55], s70 offen sc1")
    A("s_waitcnt vmcnt(0)")
    A("v_readfirstlane_b32 s72, v16")
    A("s_add_u32 s71, s71, 1")
    A("s_cmp_ge_u32 s72, 32")
    A("s_cbranch_scc1 .Lpollq_done")
    A(f"s_cmp_lt_u32 s71, {SPIN_LIMIT}")
    A("s_cbranch_scc1 .Lpollq")
    A(".Lpollq_done:")
    A("v_lshlrev_b32 v11, 5, v0")
    A("s_lshl_b32 s69, s4, 11")
    for rg in range(4):
        A(f"buffer_load_dwordx4 v[{W+8*rg}:{W+8*rg+3}], v11, s[48:51], s69 offen offset:{QP} sc1")
        A(f"buffer_load_dwordx4 v[{W+8*rg+4}:{W+8*rg+7}], v11, s[48:51], s69 offen offset:{QP+16} sc1")
        A("s_add_u32 s69, s69, 16384")
    A("s_waitcnt vmcnt(0)")
    for rg in range(1, 4):
        for j in range(8): A(f"v_add_f32 v{W+j}, v{W+j}, v{W+8*rg+j}")
    for j in range(4): A(f"v_cvt_pk_bf16_f32 v{16+j}, v{W+2*j}, v{W+2*j+1}")
    A(f"ds_write_b128 v8, v[16:19] offset:{L_Q}")
    A("s_waitcnt lgkmcnt(0)")
    A("s_barrier")
    A("s_branch .Lhcommon")
    A(".Lffn1:")
    A("s_cmp_eq_u32 s3, 1")
    A("s_cselect_b32 s44, s28, s30")
    A("s_cselect_b32 s45, s29, s31")
    A(f"s_mov_b32 s73, {UP}")
    A(f"s_cselect_b32 s73, {GP}, s73")
    A(f"s_mov_b32 s46, {448*1792*2}")
    A("s_mov_b32 s47, 0x20000")
    A("s_and_b32 s66, s2, 7")
    A("s_lshr_b32 s67, s2, 3")
    A("s_mul_i32 s62, s66, 56")
    A("s_mul_i32 s63, s62, 3584")
    A("s_lshl_b32 s69, s67, 7")
    A("s_add_u32 s63, s63, s69")
    gemv_task(7, 3584, "g")
    A("s_mul_i32 s69, s66, 7168")
    A("s_lshl_b32 s68, s67, 8")
    A("s_add_u32 s69, s69, s68")
    A("s_add_u32 s69, s69, s73")
    A("s_cmp_lt_u32 s2, 224")
    A("s_cselect_b32 s69, s69, 0x10000000")
    A(f"buffer_store_dword v{AC+2}, v11, s[48:51], s69 offen sc1")
    A("s_waitcnt vmcnt(0)")
    A("s_and_b32 s70, s2, 7")
    A("s_lshl_b32 s70, s70, 2")
    A("s_add_u32 s70, s70, 128")
    atomic_inc("s70")
    A("s_barrier")
    A("v_lshlrev_b32 v11, 2, v3")
    A("s_mov_b32 s71, 0")
    A(".Lpolla:")
    A("buffer_load_dword v16, v11, s[52:55], 0 offen offset:128 sc1")
    A("s_waitcnt vmcnt(0)")
    A("v_cmp_gt_u32 vcc, 96, v16")
    A("s_add_u32 s71, s71, 1")
    A("s_cbranch_vccz .Lpolla_done")
    A("s_sleep 8")
    A(f"s_cmp_lt_u32 s71, {SPIN_LIMIT}")
    A("s_cbranch_scc1 .Lpolla")
    A(".Lpolla_done:")
    A("s_cmp_eq_u32 s3, 2")
    A("s_cbranch_scc1 .Lh2")
    A("s_cmp_ge_u32 s2, 224")
    A("s_cbranch_scc1 .Lhcommon")
    srd(A, 60+4, 32, 1792*448*2)
    A("s_mul_i32 s69, s2, 7168")
    for d in range(8):
        off = d*896
        hi, lo = off & ~4095, off & 4095
        A(f"s_add_u32 s68, s69, {hi}")
        A(f"buffer_load_dwordx4 v[{WD+4*d}:{WD+4*d+3}], v8, s[64:67], s68 offen offset:{lo} nt")
    A("s_movk_i32 s68, 7168")
    A("v_mul_lo_u32 v11, v2, s68")
    A("v_lshl_add_u32 v11, v3, 2, v11")
    A("s_lshl_b32 s69, s2, 5")
    A(f"s_add_u32 s68, s69, {GP}")
    A("buffer_load_dword v16, v11, s[48:51], s68 offen sc1")
    A(f"s_add_u32 s68, s69, {UP}")
    A("buffer_load_dword v17, v11, s[48:51], s68 offen sc1")
    A("s_waitcnt vmcnt(0)")
    for r in (16, 17): dpp(A, "v_add_f32", r, r, r, "row_ror:8")
    cross_allreduce(A, "v_add_f32", [16, 17], [18, 19])
    A("v_cvt_pk_bf16_f32 v18, v16, v17")
    A("v_lshlrev_b32 v16, 16, v18")
    A("v_and_b32 v17, 0xffff0000, v18")
    A(f"v_mul_f32 v18, {hex(f2u(-math.log2(math.e)))}, v16")
    A("v_exp_f32 v18, v18")
    A("s_nop 0")
    A("v_add_f32 v18, 1.0, v18")
    A("v_rcp_f32 v18, v18")
    A("s_nop 0")
    A("v_mul_f32 v18, v16, v18")
    A("v_cvt_pk_bf16_f32 v18, v18, v18")
    A("v_lshlrev_b32 v18, 16, v18")
    A("v_mul_f32 v18, v18, v17")
    A("s_nop 1")
    dpp(A, "v_mov_b32", 19, 18, 18, "quad_perm:[1,0,3,2]") if False else A("v_mov_b32_dpp v19, v18 quad_perm:[1,0,3,2] row_mask:0xf bank_mask:0xf")
    A("v_cvt_pk_bf16_f32 v18, v18, v19")
    A("s_nop 0")
    for p in range(4): A(f"v_readlane_b32 s{74+p}, v18, {2*p}")
    for j in range(8): A(f"v_mov_b32 v{AC+j}, 0")
    for p in range(4):
        for dd in range(4):
            tl = 16 + (dd&1)*2
            A(f"v_perm_b32 v{tl}, v{WD+4*(2*p+1)+dd}, v{WD+4*(2*p)+dd}, s8")
            A(f"v_perm_b32 v{tl+1}, v{WD+4*(2*p+1)+dd}, v{WD+4*(2*p)+dd}, s9")
            A(f"v_dot2c_f32_bf16 v{AC+2*dd}, s{74+p}, v{tl}")
            A(f"v_dot2c_f32_bf16 v{AC+2*dd+1}, s{74+p}, v{tl+1}")
    A("v_lshrrev_b32 v11, 1, v0")
    A("v_lshlrev_b32 v11, 14, v11")
    A("v_and_b32 v12, 1, v0")
    A("v_lshl_add_u32 v11, v12, 5, v11")
    A("v_cmp_gt_u32 vcc, 56, v0")
    A("v_mov_b32 v12, 0x10000000")
    A("v_cndmask_b32 v11, v12, v11, vcc")
    for j in range(8): A(f"v_min_u32 v{AC+j}, -2, v{AC+j}")
    A("s_lshl_b32 s68, s2, 6")
    A(f"s_add_u32 s68, s68, {YF}")
    A(f"buffer_store_dwordx4 v[{AC}:{AC+3}], v11, s[48:51], s68 offen sc1")
    A(f"buffer_store_dwordx4 v[{AC+4}:{AC+7}], v11, s[48:51], s68 offen offset:16 sc1")
    A("s_branch .Lhcommon")
    A(".Lh2:")
    A("s_cmp_ge_u32 s2, 28")
    A("s_cbranch_scc1 .Lhcommon")
    A("v_and_b32 v16, 3, v0")
    A("v_lshrrev_b32 v17, 5, v0")
    A("v_bfe_u32 v18, v0, 4, 1")
    A("v_lshlrev_b32 v16, 2, v16")
    A("v_lshl_add_u32 v16, v17, 1, v16")
    A("v_add_u32 v56, v16, v18")
    A("v_lshlrev_b32 v16, 1, v56")
    A("s_lshl_b32 s68, s2, 5")
    A("buffer_load_ushort v57, v16, s[40:43], s68 offen")
    A("s_lshl_b32 s68, s2, 14")
    A(f"s_add_u32 s68, s68, {YF}")
    A("s_mov_b32 s71, 0")
    A(".Lpollf:")
    for k in range(14):
        off = k*1024
        hi, lo = off & ~4095, off & 4095
        A(f"s_add_u32 s69, s68, {hi}")
        A(f"buffer_load_dwordx4 v[{W+4*k}:{W+4*k+3}], v8, s[48:51], s69 offen offset:{lo} sc1")
    A("s_waitcnt vmcnt(0)")
    A(f"v_max_u32 v16, v{W}, v{W+1}")
    for r in range(2, 56, 2): A(f"v_max3_u32 v16, v16, v{W+r}, v{W+r+1}")
    A("v_cmp_eq_u32 vcc, -1, v16")
    A("s_add_u32 s71, s71, 1")
    A("s_cbranch_vccz .Lpollf_done")
    A("s_sleep 16")
    A(f"s_cmp_lt_u32 s71, {SPIN_LIMIT}")
    A("s_cbranch_scc1 .Lpollf")
    A(".Lpollf_done:")
    def colreduce(nk, dst):
        for k in range(1, nk):
            for j in range(4): A(f"v_add_f32 v{W+j}, v{W+j}, v{W+4*k+j}")
        A("s_nop 1")
        for j in range(2): A(f"v_permlane32_swap_b32 v{W+j}, v{W+2+j}")
        A("s_nop 1")
        for j in range(2): A(f"v_add_f32 v{W+j}, v{W+j}, v{W+2+j}")
        A("s_nop 1")
        A(f"v_permlane16_swap_b32 v{W}, v{W+1}")
        A("s_nop 1")
        A(f"v_add_f32 v{dst}, v{W}, v{W+1}")
        A("s_nop 1")
        dpp(A, "v_add_f32", dst, dst, dst, "row_ror:4")
        A("s_nop 1")
        dpp(A, "v_add_f32", dst, dst, dst, "row_ror:8")
    colreduce(14, 58)
    A("v_cvt_pk_bf16_f32 v58, v58, v58")
    A("v_lshlrev_b32 v58, 16, v58")
    A("v_lshlrev_b32 v57, 16, v57")
    A("s_branch .Lhcommon")
    A(".Lh3:")
    for j in range(4): A(f"v_mov_b32 v{16+j}, -1")
    A("v_lshrrev_b32 v11, 2, v0")
    A("v_and_b32 v12, 3, v0")
    A("v_lshlrev_b32 v13, 11, v11")
    A("v_lshl_add_u32 v13, v12, 4, v13")
    A("s_lshl_b32 s68, s4, 16")
    A("s_lshl_b32 s69, s5, 6")
    A("s_add_u32 s68, s68, s69")
    A(f"s_add_u32 s68, s68, {OP}")
    A("buffer_store_dwordx4 v[16:19], v13, s[48:51], s68 offen sc1")
    A("s_add_u32 s68, s68, 32768")
    A("buffer_store_dwordx4 v[16:19], v13, s[48:51], s68 offen sc1")
    A("v_lshlrev_b32 v14, 8, v0")
    A("v_cmp_gt_u32 vcc, 2, v0")
    A("v_mov_b32 v15, 0x10000000")
    A("v_cndmask_b32 v14, v15, v14, vcc")
    A("s_lshl_b32 s68, s4, 9")
    A("s_lshl_b32 s69, s5, 3")
    A("s_add_u32 s68, s68, s69")
    A(f"s_add_u32 s68, s68, {ST}")
    A("buffer_store_dwordx2 v[16:17], v14, s[48:51], s68 offen sc1")
    A("v_lshlrev_b32 v13, 14, v11")
    A("v_lshl_add_u32 v13, v12, 4, v13")
    A("v_cmp_gt_u32 vcc, 48, v0")
    A(f"v_add_u32 v14, {16*16384}, v13")
    A("v_cndmask_b32 v14, v15, v14, vcc")
    A("s_lshl_b32 s69, s2, 6")
    for base in (YA, YF):
        A(f"s_add_u32 s68, s69, {base}")
        A("buffer_store_dwordx4 v[16:19], v13, s[48:51], s68 offen sc1")
        A("buffer_store_dwordx4 v[16:19], v14, s[48:51], s68 offen sc1")
    A("s_waitcnt vmcnt(0)")
    A("s_and_b32 s70, s2, 7")
    A("s_lshl_b32 s70, s70, 2")
    A("s_add_u32 s70, s70, 128")
    atomic_inc("s70")
    wo_loads()
    A("s_barrier")
    A(".Lhcommon:")
    A("s_waitcnt vmcnt(0)")
    for p in range(8):
        A(f"v_perm_b32 v{WOP+2*p}, v{WO+2*p+1}, v{WO+2*p}, s8")
        A(f"v_perm_b32 v{WOP+2*p+1}, v{WO+2*p+1}, v{WO+2*p}, s9")
    A("v_lshlrev_b32 v60, 5, v0")
    A("v_lshrrev_b32 v61, 1, v0")
    A("v_lshlrev_b32 v61, 3, v61")
    A("s_lshl_b32 s74, s2, 11")
    A(f"s_add_u32 s74, s74, {OP}")
    A("s_lshr_b32 s75, s2, 4")
    A("s_lshl_b32 s75, s75, 8")
    A(f"s_add_u32 s75, s75, {ST}")
    A("s_mul_i32 s68, s3, 112")
    A("v_lshl_add_u32 v62, v0, 1, s68")
    A("v_lshrrev_b32 v63, 4, v62")
    A("v_and_b32 v62, 15, v62")
    A("v_lshlrev_b32 v62, 2, v62")
    A("v_lshl_add_u32 v62, v63, 14, v62")
    A("v_cmp_gt_u32 vcc, 56, v0")
    A("v_mov_b32 v63, 0x10000000")
    A("v_cndmask_b32 v62, v63, v62, vcc")
    A("s_lshl_b32 s76, s2, 6")
    A(f"s_add_u32 s76, s76, {YA}")
    A("v_lshrrev_b32 v11, 2, v0")
    A("v_and_b32 v12, 3, v0")
    A("v_lshlrev_b32 v59, 11, v11")
    A("v_lshl_add_u32 v59, v12, 4, v59")
    A("s_lshl_b32 s77, s4, 1")
    A("s_add_u32 s77, s77, s3")
    A("s_lshl_b32 s78, s77, 15")
    A("s_lshl_b32 s69, s5, 6")
    A("s_add_u32 s78, s78, s69")
    A(f"s_add_u32 s78, s78, {OP}")
    A("s_lshl_b32 s79, s77, 8")
    A("s_lshl_b32 s69, s5, 3")
    A("s_add_u32 s79, s79, s69")
    A(f"s_add_u32 s79, s79, {ST}")
    A("s_lshl_b32 s69, s3, 10")
    A("v_add_u32 v55, s69, v8")
    A("s_lshl_b32 s69, s3, 3")
    A("v_mov_b32 v54, s69")
    A("s_barrier")
    if diag: A("s_memrealtime s[92:93]")
    A("s_cmp_ge_u32 s3, 2")
    A("s_cbranch_scc1 .LstageA")
    for sw in range(4):
        A(f"ds_read_b64 v[{16+2*sw}:{17+2*sw}], v54 offset:{L_STAT+16*sw}")
    for sw in range(4):
        A(f"ds_read_b128 v[{W+4*sw}:{W+4*sw+3}], v55 offset:{L_PART+2048*sw}")
    A("s_waitcnt lgkmcnt(4)")
    A("v_max_f32 v24, v16, v18")
    A("v_max3_f32 v24, v24, v20, v22")
    for sw in range(4): A(f"v_sub_f32 v{16+2*sw}, v{16+2*sw}, v24")
    for sw in range(4): A(f"v_mul_f32 v{16+2*sw}, s10, v{16+2*sw}")
    for sw in range(4): A(f"v_exp_f32 v{16+2*sw}, v{16+2*sw}")
    A("s_nop 0")
    A("v_mul_f32 v25, v16, v17")
    for sw in range(1, 4): A(f"v_fmac_f32 v25, v{16+2*sw}, v{17+2*sw}")
    A("s_waitcnt lgkmcnt(0)")
    for j in range(4): A(f"v_mul_f32 v{28+j}, v16, v{W+j}")
    for sw in range(1, 4):
        for j in range(4): A(f"v_fmac_f32 v{28+j}, v{16+2*sw}, v{W+4*sw+j}")
    for j in range(4): A(f"v_min_u32 v{28+j}, -2, v{28+j}")
    A("v_min_u32 v24, -2, v24")
    A("v_min_u32 v25, -2, v25")
    A("buffer_store_dwordx4 v[28:31], v59, s[48:51], s78 offen sc1")
    A("s_mov_b64 exec, 1")
    A("buffer_store_dwordx2 v[24:25], v9, s[48:51], s79 offen sc1")
    A("s_mov_b64 exec, -1")
    A(".LstageA:")
    A("s_mov_b32 s71, 0")
    A(".LpollA:")
    A(f"buffer_load_dwordx4 v[{W}:{W+3}], v60, s[48:51], s74 offen sc1")
    A(f"buffer_load_dwordx4 v[{W+4}:{W+7}], v60, s[48:51], s74 offen offset:16 sc1")
    A(f"buffer_load_dwordx2 v[{W+8}:{W+9}], v61, s[48:51], s75 offen sc1")
    A("s_waitcnt vmcnt(0)")
    A(f"v_max_u32 v16, v{W}, v{W+1}")
    for r in range(2, 10, 2): A(f"v_max3_u32 v16, v16, v{W+r}, v{W+r+1}")
    A("v_cmp_eq_u32 vcc, -1, v16")
    A("s_add_u32 s71, s71, 1")
    A("s_cbranch_vccz .LpollA_done")
    A(f"s_cmp_lt_u32 s71, {SPIN_LIMIT}")
    A("s_cbranch_scc1 .LpollA")
    A(".LpollA_done:")
    if diag: A("s_memrealtime s[94:95]")
    A(f"v_mov_b32 v16, v{W+8}")
    row_allreduce(A, "v_max_f32", [16])
    cross_allreduce(A, "v_max_f32", [16], [17])
    A(f"v_sub_f32 v16, v{W+8}, v16")
    A("v_mul_f32 v16, s10, v16")
    A("v_exp_f32 v16, v16")
    A("s_nop 0")
    A(f"v_mul_f32 v17, v16, v{W+9}")
    for j in range(8): A(f"v_mul_f32 v{W+j}, v16, v{W+j}")
    A("v_mov_b32 v18, v17")
    A("s_nop 0")
    for j in range(4): A(f"v_permlane32_swap_b32 v{W+j}, v{W+4+j}")
    A("v_permlane32_swap_b32 v17, v18")
    A("s_nop 1")
    for j in range(4): A(f"v_add_f32 v{W+j}, v{W+j}, v{W+4+j}")
    A("v_add_f32 v17, v17, v18")
    A("v_mov_b32 v18, v17")
    A("s_nop 1")
    for j in range(2): A(f"v_permlane16_swap_b32 v{W+j}, v{W+2+j}")
    A("v_permlane16_swap_b32 v17, v18")
    A("s_nop 1")
    for j in range(2): A(f"v_add_f32 v{W+j}, v{W+j}, v{W+2+j}")
    A("v_add_f32 v17, v17, v18")
    for ctrl in ["quad_perm:[2,3,0,1]", "row_ror:4", "row_ror:8"]:
        A("s_nop 0")
        for r in (W, W+1, 17): dpp(A, "v_add_f32", r, r, r, ctrl)
    A("v_rcp_f32 v17, v17")
    A("s_nop 0")
    A(f"v_mul_f32 v{W}, v{W}, v17")
    A(f"v_mul_f32 v{W+1}, v{W+1}, v17")
    A(f"v_cvt_pk_bf16_f32 v16, v{W}, v{W+1}")
    A("v_mov_b32 v24, 0")
    A("v_mov_b32 v25, 0")
    for jp in range(8):
        lane = (jp >> 2) + 16*(jp & 1) + 32*((jp >> 1) & 1)
        A(f"v_readlane_b32 s{80+jp}, v16, {lane}")
    A("s_nop 0")
    for jp in range(8):
        A(f"v_dot2c_f32_bf16 v24, s{80+jp}, v{WOP+2*jp}")
        A(f"v_dot2c_f32_bf16 v25, s{80+jp}, v{WOP+2*jp+1}")
    A("s_nop 2")
    A("v_min_u32 v24, -2, v24")
    A("v_min_u32 v25, -2, v25")
    A("buffer_store_dwordx2 v[24:25], v62, s[48:51], s76 offen sc1")
    A("s_cmp_ge_u32 s2, 28")
    A("s_cbranch_scc1 .Lhdone")
    A("s_lshl_b32 s68, s2, 14")
    A("s_lshl_b32 s69, s3, 12")
    A("s_add_u32 s68, s68, s69")
    A(f"s_add_u32 s68, s68, {YA}")
    A("s_mov_b32 s71, 0")
    A(".LpollB:")
    for k in range(4):
        A(f"buffer_load_dwordx4 v[{W+4*k}:{W+4*k+3}], v8, s[48:51], s68 offen offset:{k*1024} sc1")
    A("s_waitcnt vmcnt(0)")
    A(f"v_max_u32 v16, v{W}, v{W+1}")
    for r in range(2, 16, 2): A(f"v_max3_u32 v16, v16, v{W+r}, v{W+r+1}")
    A("v_cmp_eq_u32 vcc, -1, v16")
    A("s_add_u32 s71, s71, 1")
    A("s_cbranch_vccz .LpollB_done")
    A(f"s_cmp_lt_u32 s71, {SPIN_LIMIT}")
    A("s_cbranch_scc1 .LpollB")
    A(".LpollB_done:")
    colreduce(4, 20)
    A("v_and_b32 v16, 3, v0")
    A("v_lshrrev_b32 v17, 5, v0")
    A("v_bfe_u32 v18, v0, 4, 1")
    A("v_lshlrev_b32 v16, 2, v16")
    A("v_lshl_add_u32 v16, v17, 1, v16")
    A("v_add_u32 v16, v16, v18")
    A("v_lshlrev_b32 v16, 2, v16")
    A("s_lshl_b32 s69, s3, 6")
    A("v_add_u32 v17, s69, v16")
    A(f"ds_write_b32 v17, v20 offset:{L_FIN}")
    A("s_waitcnt lgkmcnt(0)")
    A("s_barrier")
    A("s_cmp_eq_u32 s3, 2")
    A("s_cbranch_scc0 .Lhdone")
    for hw in range(4): A(f"ds_read_b32 v{20+hw}, v16 offset:{L_FIN+64*hw}")
    srd(A, 64, 34, 896)
    A("s_waitcnt lgkmcnt(0)")
    A("v_add_f32 v20, v20, v21")
    A("v_add_f32 v22, v22, v23")
    A("v_add_f32 v20, v20, v22")
    A("v_cvt_pk_bf16_f32 v20, v20, v20")
    A("v_lshlrev_b32 v20, 16, v20")
    A("v_add_f32 v20, v57, v20")
    A("v_cvt_pk_bf16_f32 v20, v20, v20")
    A("v_lshlrev_b32 v20, 16, v20")
    A("v_add_f32 v20, v20, v58")
    A("v_cvt_pk_bf16_f32 v20, v20, v20")
    A("v_lshlrev_b32 v16, 1, v56")
    A("s_lshl_b32 s68, s2, 5")
    A("v_and_b32 v17, 12, v0")
    A("v_cmp_eq_u32 vcc, 0, v17")
    A("s_and_saveexec_b64 s[70:71], vcc")
    A("buffer_store_short v20, v16, s[64:67], s68 offen")
    A("s_mov_b64 exec, -1")
    A(".Lhdone:")
    if diag:
        A("s_memrealtime s[96:97]")
        srd(A, 48, 38, 0x2000000)
        A("s_waitcnt lgkmcnt(0)")
        A("v_mov_b32 v4, s90\nv_mov_b32 v5, s92\nv_mov_b32 v6, s94\nv_mov_b32 v7, s96")
        A(f"s_lshl_b32 s13, s2, 3\ns_add_u32 s13, s13, s3\ns_lshl_b32 s13, s13, 5\ns_add_u32 s13, s13, {TS}")
        A("v_mov_b32 v2, s13")
        A("buffer_store_dwordx4 v[4:7], v2, s[48:51], 0 offen")
    A(".Ldone:")
    A("s_endpgm")
    A(f""".section .rodata,"a"
.p2align 6
.amdhsa_kernel {KN}
  .amdhsa_next_free_vgpr 224
  .amdhsa_next_free_sgpr 102
  .amdhsa_accum_offset 224
  .amdhsa_group_segment_fixed_size 0
  .amdhsa_kernarg_size 96
  .amdhsa_user_sgpr_count 2
  .amdhsa_user_sgpr_kernarg_segment_ptr 1
  .amdhsa_system_sgpr_workgroup_id_x 1
.end_amdhsa_kernel""")
    return A.text()

if __name__ == "__main__":
    s = gen(False)
    open("k1.s", "w").write(s)
    build(s, "k1.co")
    sd = gen(True)
    build(sd, "k1d.co")
    print("LDS", LDS_BYTES)
```
